```python
import torch

def _softmax(x, axis=-1):
    return torch.softmax(x, dim=axis)
def _gelu(x):
    return torch.nn.functional.gelu(x, approximate="tanh")
def _silu(x):
    return torch.nn.functional.silu(x)
def _sigmoid(x):
    return torch.sigmoid(x)
def _layernorm(x, axis=-1, eps=1e-5):
    m = x.mean(dim=axis, keepdim=True)
    v = x.var(dim=axis, keepdim=True, unbiased=False)
    return (x - m) / torch.sqrt(v + eps)
def _scatter_add(tgt, idx, src, axis=0):
    return tgt.clone().index_add_(axis, idx, src)
def _segment_sum(src, seg, n):
    out = torch.zeros((n,) + src.shape[1:], dtype=src.dtype)
    return out.index_add_(0, seg, src)
def _pad(x, pw):
    flat = tuple(v for pair in reversed(pw) for v in pair)
    return torch.nn.functional.pad(x, flat)

kernel_name = 'gated_mix__ssm_conv_s5__swiglu_ffn__prompt'

def setup_inputs():

    _w = (lambda a: (lambda t: t.to(torch.bfloat16) if t.is_floating_point() else t)(torch.as_tensor(a)))
    def _A_setup():
        B, S, D = 1, 2048, 576
        P = D
        Lambda_re = -0.5 * (lambda _x: torch.exp(torch.as_tensor(_x)))((lambda *s: torch.randn(*s, dtype=torch.bfloat16) * 0.2)(P))
        Lambda_im = (lambda *s: torch.randn(*s, dtype=torch.bfloat16) * 0.4)(P) * 1.0
        B_re = (lambda *s: torch.randn(*s, dtype=torch.bfloat16) * 0.2)(P, D) * (D ** -0.5)
        B_im = (lambda *s: torch.randn(*s, dtype=torch.bfloat16) * 0.2)(P, D) * (D ** -0.5)
        C_re = (lambda *s: torch.randn(*s, dtype=torch.bfloat16) * 0.2)(D, P) * (P ** -0.5)
        C_im = (lambda *s: torch.randn(*s, dtype=torch.bfloat16) * 0.2)(D, P) * (P ** -0.5)
        log_dt = (lambda *s: torch.randn(*s, dtype=torch.bfloat16) * 0.2)(P) * 0.3 - 2.0
        Dskip = (lambda *s: torch.randn(*s, dtype=torch.bfloat16) * 0.05)(D)
        return {
            "x": _w((lambda *s: torch.randn(*s, dtype=torch.bfloat16) * 0.05)(B, S, D)),
            "Lambda_re": _w(Lambda_re),
            "Lambda_im": _w(Lambda_im),
            "B_re": _w(B_re),
            "B_im": _w(B_im),
            "C_re": _w(C_re),
            "C_im": _w(C_im),
            "log_dt": _w(log_dt),
            "Dskip": _w(Dskip),
        }
    _A_in = _A_setup()

    def _B_setup():
        B, S, D, F = 1, 2048, 576, 4608
        return {
            "x": _w((lambda *s: torch.randn(*s, dtype=torch.bfloat16) * 0.05)(B, S, D)),
            "w_gate": _w((lambda *s: torch.randn(*s, dtype=torch.bfloat16) * 0.05)(D, F)),
            "w_up": _w((lambda *s: torch.randn(*s, dtype=torch.bfloat16) * 0.05)(D, F)),
            "w_down": _w((lambda *s: torch.randn(*s, dtype=torch.bfloat16) * 0.05)(F, D)),
        }
    _B_in = _B_setup()

    return {
        "A_x": _A_in["x"],
        "A_Lambda_re": _A_in["Lambda_re"],
        "A_Lambda_im": _A_in["Lambda_im"],
        "A_B_re": _A_in["B_re"],
        "A_B_im": _A_in["B_im"],
        "A_C_re": _A_in["C_re"],
        "A_C_im": _A_in["C_im"],
        "A_log_dt": _A_in["log_dt"],
        "A_Dskip": _A_in["Dskip"],
        "B_x": _B_in["x"],
        "B_w_gate": _B_in["w_gate"],
        "B_w_up": _B_in["w_up"],
        "B_w_down": _B_in["w_down"],
        "gate_w": _w((lambda *s: torch.randn(*s, dtype=torch.bfloat16) * 0.05)(576) * 16.0),
    }

def reference(A_x, A_Lambda_re, A_Lambda_im, A_B_re, A_B_im, A_C_re, A_C_im, A_log_dt, A_Dskip, B_x, B_w_gate, B_w_up, B_w_down, gate_w):
    def _A_ref(x, Lambda_re, Lambda_im, B_re, B_im, C_re, C_im, log_dt, Dskip):
        Bsz, L, H = x.shape
        Lam = Lambda_re + 1j * Lambda_im
        Bmat = B_re + 1j * B_im
        Cmat = C_re + 1j * C_im
        dt = torch.exp(log_dt)
        Lam_bar = torch.exp(dt * Lam)
        B_bar = ((Lam_bar - 1.0) / Lam)[:, None] * Bmat
        Bu = torch.einsum("bld,pd->blp", x + 0j, B_bar)
        h = torch.zeros_like(Bu[:, 0, :])
        hs = []
        for t in range(L):
            h = Lam_bar[None, :] * h + Bu[:, t, :]
            hs.append(h)
        hseq = torch.stack(hs, 1)
        y = 2.0 * torch.einsum("blp,dp->bld", hseq, Cmat).real + x * Dskip[None, None, :]
        return y

    def _B_ref(x, w_gate, w_up, w_down):
        g = _silu(x @ w_gate)
        u = x @ w_up
        return (g * u) @ w_down

    x = A_x
    g = _sigmoid((x * gate_w).sum(-1, keepdims=True))
    a = _A_ref(x, A_Lambda_re, A_Lambda_im, A_B_re, A_B_im, A_C_re, A_C_im, A_log_dt, A_Dskip)
    b = _B_ref(x, B_w_gate, B_w_up, B_w_down)
    return g * a + (1 - g) * b
```

```python
import re

class Asm:
    def __init__(self):
        self.lines = []
        self.vm = []
        self.lg = []
    def e(self, s):
        self.lines.append("    " + s)
    def raw(self, s):
        self.lines.append(s)
    def label(self, s):
        self.lines.append(s + ":")
    def c(self, s):
        self.lines.append("    ; " + s)
    def vmem(self, s, tag=None):
        self.e(s); self.vm.append(tag)
    def lds(self, s, tag=None):
        self.e(s); self.lg.append(tag)
    @staticmethod
    def _cnt(fifo, tags):
        last = -1
        for i, t in enumerate(fifo):
            if t in tags: last = i
        if last < 0: return None
        n = len(fifo) - 1 - last
        return n
    def wait(self, vm=(), lg=()):
        parts = []
        if vm == "all":
            if self.vm: parts.append("vmcnt(0)"); self.vm = []
        elif vm:
            n = self._cnt(self.vm, set(vm))
            if n is not None:
                n = min(n, 63)
                parts.append(f"vmcnt({n})"); self.vm = self.vm[len(self.vm) - n:] if n else []
        if lg == "all":
            if self.lg: parts.append("lgkmcnt(0)"); self.lg = []
        elif lg:
            n = self._cnt(self.lg, set(lg))
            if n is not None:
                n = min(n, 15)
                parts.append(f"lgkmcnt({n})"); self.lg = self.lg[len(self.lg) - n:] if n else []
        if parts: self.e("s_waitcnt " + " ".join(parts))
    def text(self):
        return "\n".join(self.lines) + "\n"

_REG = re.compile(r"^(-|\|)?(abs\()?([vas])(\d+|\[(\d+):(\d+)\])\)?\|?$")
def regs(op):
    op = op.strip()
    if op in ("vcc", "vcc_lo", "vcc_hi"): return [("s", 106), ("s", 107)]
    if op in ("exec", "exec_lo", "exec_hi"): return [("s", 126), ("s", 127)]
    if op == "m0": return [("s", 124)]
    m = _REG.match(op)
    if not m: return []
    k = m.group(3)
    if m.group(5) is not None: return [(k, i) for i in range(int(m.group(5)), int(m.group(6)) + 1)]
    return [(k, int(m.group(4)))]

TRANS = ("v_exp_f32", "v_log_f32", "v_rcp_f32", "v_rsq_f32", "v_sqrt_f32", "v_sin_f32", "v_cos_f32", "v_rcp_iflag_f32")
def parse(line):
    s = line.split(";")[0].strip()
    if not s or s.endswith(":") or s.startswith("."): return None
    p = s.split(None, 1)
    mn = p[0]; rest = p[1] if len(p) > 1 else ""
    ops = []
    for o in rest.split(","):
        o = o.strip()
        if not o: continue
        ops.append(o.split()[0])
    mods = rest
    d, r = [], []
    R = [regs(o) for o in ops]
    flat = lambda L: [x for l in L for x in l]
    kind = "other"
    if mn.startswith("v_mfma"):
        kind = "mfma"; d = R[0]; r = flat(R[1:])
        return dict(mn=mn, kind=kind, d=d, r=r, a=R[1], b=R[2], c=R[3], s=s)
    if mn.startswith("v_"):
        kind = "valu"
        if mn.startswith("v_cmpx"): d = R[0] + [("s",126),("s",127)]; r = flat(R[1:])
        elif "_swap_" in mn: d = R[0] + R[1]; r = R[0] + R[1]
        elif re.match(r"v_(add|sub|subrev|addc|subb|subbrev)_co_", mn) or mn.startswith("v_div_scale") or mn.startswith("v_mad_u64"): d = R[0] + R[1]; r = flat(R[2:])
        elif mn.startswith(("v_fmac", "v_dot2c", "v_pk_fmac", "v_writelane")): d = R[0]; r = flat(R)
        elif mn == "v_nop": pass
        else:
            d = R[0]; r = flat(R[1:])
            if mn.startswith("v_cndmask") and len(ops) == 3: r += [("s",106),("s",107)]
            if "dpp" in mn or "row_" in mods or "quad_perm" in mods: r += R[0]
    elif mn.startswith("ds_"):
        kind = "ds"
        if mn.startswith(("ds_read", "ds_bpermute", "ds_permute", "ds_swizzle")): d = R[0]; r = flat(R[1:])
        else: r = flat(R)
    elif mn.startswith(("buffer_", "global_", "flat_")):
        kind = "vmem"
        if mn in ("buffer_inv", "buffer_wbl2"): pass
        elif "load" in mn and (" lds" in (" " + mods) or "load_lds" in mn): r = flat(R) + [("s",124)]; kind = "vmemlds"
        elif "load" in mn: d = R[0]; r = flat(R[1:])
        elif "atomic" in mn:
            r = flat(R)
            if " sc0" in mods and mn.startswith("buffer"): d = R[0]
        else:
            r = flat(R); kind = "vstore"
    elif mn.startswith("s_"):
        kind = "salu"
        if mn.startswith(("s_cmp", "s_cbranch", "s_branch", "s_waitcnt", "s_barrier", "s_nop", "s_endpgm", "s_sleep", "s_setprio", "s_bitcmp", "s_setreg")): r = flat(R)
        elif "saveexec" in mn: d = R[0] + [("s",126),("s",127)]; r = flat(R[1:])
        else: d = R[0]; r = flat(R[1:])
    return dict(mn=mn, kind=kind, d=d, r=r, s=s, ops=ops, R=R, mods=mods)

def lint(lines, verbose=True):
    ins = []
    for ln, l in enumerate(lines):
        p = parse(l)
        if p: p["ln"] = ln; ins.append(p)
    errs = []
    n = len(ins)
    def states(i):
        m = ins[i]
        if m["mn"] == "s_nop": return int(m["ops"][0], 0) + 1
        return 1
    for i, A in enumerate(ins):
        dist = 0
        Ad = set(A["d"])
        passes = 0
        if A["kind"] == "mfma": passes = 8 if "32x32" in A["mn"] else 4
        for j in range(i + 1, min(n, i + 24)):
            B = ins[j]
            Br, Bd = set(B["r"]), set(B["d"])
            need = 0; why = ""
            if A["kind"] == "mfma":
                if B["kind"] == "mfma":
                    if Ad & (set(B["a"]) | set(B["b"])): need, why = (12 if passes == 8 else 8), "mfma D->mfma A/B"
                    elif Ad & set(B["c"]) and not (B["c"] == A["d"] and B["mn"] == A["mn"]): need, why = (10 if passes == 8 else 6), "mfma D->mfma C overlap"
                    elif Ad & Bd and not (B["c"] == A["d"]): need, why = (10 if passes == 8 else 6), "mfma D->mfma D waw (conservative)"
                elif B["kind"] in ("valu", "ds", "vmem", "vstore", "vmemlds"):
                    if Ad & (Br | Bd): need, why = (12 if passes == 8 else 8), "mfma D->valu/mem"
                    elif B["kind"] == "valu" and set(A["c"]) & Bd: need, why = (7 if passes == 8 else 3), "mfma C WAR valu"
            elif A["kind"] == "valu":
                vd = {x for x in Ad if x[0] in "va"}; sd = {x for x in Ad if x[0] == "s"}
                if B["kind"] == "mfma" and vd & Br: need, why = 2, "valu->mfma"
                if B["kind"] == "mfma" and ("s",126) in sd: need, why = 4, "valu exec->mfma"
                if B["kind"] == "valu":
                    if A["mn"].replace("_e32","").replace("_e64","") in TRANS and vd & Br and B["mn"].replace("_e32","").replace("_e64","") not in TRANS: need, why = max(need,1), "trans->valu"
                    if vd & Br and "permlane" in B["mn"]: need, why = 2, "valu->permlane"
                    if vd & Br and ("dpp" in B["mn"] or "row_" in B["mods"] or "quad_perm" in B["mods"]): need, why = 2, "valu->dpp"
                    if vd & Br and B["mn"].startswith(("v_readlane", "v_readfirstlane")): need, why = max(need,1), "valu->readlane"
                    if sd & Br:
                        if B["mn"].startswith(("v_readlane", "v_writelane")): need, why = 4, "valu sgpr->lanesel"
                        else: need, why = max(need,2), "valu sgpr->valu"
                    if ("s",126) in sd and ("dpp" in B["mn"] or "row_" in B["mods"]): need, why = 5, "exec->dpp"
                if B["kind"] in ("vmem", "vstore", "vmemlds") and sd & Br: need, why = 5, "valu sgpr->vmem"
            elif A["kind"] == "salu":
                if ("s",124) in Ad and B["kind"] == "vmemlds": need, why = 1, "m0->ldsdma"
            elif A["kind"] == "vstore":
                if ("x4" in A["mn"] or "x3" in A["mn"]):
                    data = set(A["R"][0]) if A["mn"].startswith("buffer") else set(A["R"][1])
                    if data & Bd: need, why = (2 if B["kind"] == "valu" else 1), "store data WAR"
            if need > dist:
                errs.append(f"line {A['ln']+1}->{B['ln']+1}: {why}: have {dist} need {need}\n     {A['s']}\n     {B['s']}")
            dist += states(j)
            if dist >= 20: break
            if B["mn"] in ("s_endpgm", "s_branch"): break
    if verbose:
        for e in errs[:40]: print("LINT:", e)
    return errs
```

```python
import sys
from asmlib import Asm, lint

T, D, F, P = 2048, 576, 4608, 576
KS_F = F // 16
KS_S = 2 * P // 16
KS = KS_F + KS_S
WS_H   = 0
H_BYTES = 64 * KS * 1024
WS_W2  = H_BYTES
W2_BYTES = KS * 18 * 1024
WS_G   = WS_W2 + W2_BYTES
G_BYTES = T * 4
WS_AGG = WS_G + 2 * G_BYTES
AGG_BYTES = 6 * 8 * 3 * 2 * 32 * 4
WS_END = WS_AGG + AGG_BYTES

S_X, S_LRE, S_LIM, S_BRE, S_BIM, S_CRE, S_CIM, S_LDT = 16, 18, 20, 22, 24, 26, 28, 30
S_DSK, S_BX, S_WG, S_WU, S_WD, S_GW, S_OUT, S_DBG, S_WS = 32, 34, 36, 38, 40, 42, 44, 46, 48
S_WAVE = 50
S_XCD, S_J = 51, 3

def srd(a, d, ptr, size, bias=0, add=0):
    if bias:
        a.e(f"s_sub_u32 s{d}, s{ptr}, {bias}")
        a.e(f"s_subb_u32 s{d+1}, s{ptr+1}, 0")
    elif add:
        a.e(f"s_add_u32 s{d}, s{ptr}, {add}")
        a.e(f"s_addc_u32 s{d+1}, s{ptr+1}, 0")
    else:
        a.e(f"s_mov_b32 s{d}, s{ptr}")
        a.e(f"s_mov_b32 s{d+1}, s{ptr+1}")
    a.e(f"s_mov_b32 s{d+2}, {size + bias}")
    a.e(f"s_mov_b32 s{d+3}, 0x20000")

def common_prologue(a, nwg, endlabel):
    a.e(f"s_cmp_ge_u32 s2, {nwg}")
    a.e(f"s_cbranch_scc1 {endlabel}")
    a.e("s_load_dwordx16 s[16:31], s[0:1], 0")
    a.e("s_load_dwordx16 s[32:47], s[0:1], 64")
    a.e("s_load_dwordx2 s[48:49], s[0:1], 128")
    a.e("v_lshrrev_b32 v1, 6, v0")
    a.e("v_and_b32 v0, 63, v0")
    a.e(f"s_and_b32 s{S_XCD}, s2, 7")
    a.e(f"v_readfirstlane_b32 s{S_WAVE}, v1")
    a.e(f"s_lshr_b32 s{S_J}, s2, 3")
    a.e("s_waitcnt lgkmcnt(0)")

class Gap:
    def __init__(self, a, budget=24):
        self.a = a; self.budget = budget
        self.q = []
    def mfma(self, s, must=(), queues=()):
        a = self.a
        a.e(s)
        left = self.budget
        for cost, fn in must:
            fn(); left -= cost
        for q in queues:
            while q and q[0][0] <= left:
                cost, fn = q.pop(0)
                fn(); left -= cost
            if q and q[0][0] > left and False: break

def drain(q):
    while q:
        _, fn = q.pop(0); fn()

REGION = 40960
V_XD = 2
V_XR = 6
S_XB = 52
S_REG = 53
S_T0, S_T1 = 54, 55
SRD_X = 56

def x_setup(a, perm):
    a.e("v_lshrrev_b32 v10, 3, v0")
    if not perm:
        a.e("v_mul_u32_u24 v11, 1152, v10")
        rowstep = 8
    else:
        a.e("v_lshrrev_b32 v11, 5, v0")
        a.e("v_lshlrev_b32 v11, 5, v11")
        a.e("v_and_b32 v12, 1, v10")
        a.e("v_lshl_add_u32 v11, v12, 4, v11")
        a.e("v_bfe_u32 v12, v0, 4, 1")
        a.e("v_add_u32 v11, v11, v12")
        a.e("v_mul_u32_u24 v11, 1152, v11")
        rowstep = 2
    a.e("v_and_b32 v12, 7, v0")
    a.e("v_lshrrev_b32 v13, 4, v0")
    a.e("v_xor_b32 v12, v12, v13")
    a.e("v_lshl_add_u32 v13, v12, 4, v11")
    a.e("v_xor_b32 v12, 4, v12")
    a.e("v_lshl_add_u32 v14, v12, 4, v11")
    for q in range(4):
        a.e(f"v_add_u32 v{V_XD+q}, {q * (rowstep * 1152 - 1024)}, v{13 + (q & 1)}")
    a.e("v_and_b32 v10, 31, v0")
    a.e("v_bfe_u32 v11, v0, 1, 3")
    a.e("v_lshrrev_b32 v12, 5, v0")
    a.e("v_xor_b32 v11, v11, v12")
    a.e("v_lshlrev_b32 v10, 7, v10")
    a.e(f"v_add_u32 v10, s{S_REG}, v10")
    for ks in range(4):
        a.e(f"v_xor_b32 v12, {2*ks}, v11")
        a.e(f"v_lshl_add_u32 v{V_XR+ks}, v12, 4, v10")
    return rowstep

def x_dma_ops(a, j, piece, halfstep_rows):
    ops = []
    for half in range(2):
        def setup(half=half):
            a.e(f"s_add_u32 m0, s{S_REG}, {(piece + half) * 4096}")
            a.e(f"s_add_u32 s{S_T0}, s{S_XB}, {j * 128 + half * halfstep_rows * 1152}")
        ops.append((2, setup))
        for q in range(4):
            def f(q=q):
                a.vmem(f"buffer_load_dwordx4 v{V_XD+q}, s[{SRD_X}:{SRD_X+3}], s{S_T0} offen offset:{q*1024} lds", ("x", j))
            ops.append((18, f))
    return ops

def xreg(s, tb):
    i = (s * 2 + tb) * 4
    return f"a[{i}:{i+3}]" if i < 256 else f"v[{96 + i - 256}:{96 + i - 256 + 3}]"
def acc(f, mat, tb):
    return 128 + 64 * f + 32 * mat + 16 * tb
V_WD = 12
V_WA = 16
V_HO = 22
V_WF = 64
V_ET = 32
SRD_WG, SRD_WU, SRD_H = 60, 64, 68
S_WB = 72
S_HB = 73
S_NL = 74

def g1_role(a, opt):
    a.c("======== G1 role: H = silu(x Wg) * (x Wu), 256 tokens x 192 cols per workgroup")
    a.e(f"s_mul_i32 s{S_T0}, s{S_J}, 43")
    a.e(f"s_lshr_b32 s{S_T0}, s{S_T0}, 7")
    a.e(f"s_mul_i32 s{S_T1}, s{S_T0}, 3")
    a.e(f"s_sub_u32 s{S_T1}, s{S_J}, s{S_T1}")
    a.e(f"s_mul_i32 s{S_WB}, s{S_XCD}, 3")
    a.e(f"s_add_u32 s{S_T1}, s{S_T1}, s{S_WB}")
    a.e(f"s_mul_i32 s{S_WB}, s{S_T1}, 384")
    a.e(f"s_lshl_b32 s{S_HB}, s{S_T0}, 2")
    a.e(f"s_add_u32 s{S_HB}, s{S_HB}, s{S_WAVE}")
    a.e(f"s_mul_i32 s{S_XB}, s{S_HB}, {64 * 1152}")
    a.e(f"s_mul_i32 s{S_HB}, s{S_HB}, {2 * KS * 1024}")
    a.e(f"s_mul_i32 s{S_T1}, s{S_T1}, {12 * 1024}")
    a.e(f"s_add_u32 s{S_HB}, s{S_HB}, s{S_T1}")
    a.e(f"s_mul_i32 s{S_REG}, s{S_WAVE}, {REGION}")
    a.e(f"s_mov_b32 s{S_NL}, 0xbfb8aa3b")
    srd(a, SRD_X, S_X, T * D * 2)
    srd(a, SRD_WG, S_WG, D * F * 2, bias=4096)
    srd(a, SRD_WU, S_WU, D * F * 2, bias=4096)
    srd(a, SRD_H, S_WS, H_BYTES)
    x_setup(a, False)
    a.e("v_lshrrev_b32 v10, 3, v0")
    a.e(f"s_lshl_b32 s{S_T0}, s{S_WAVE}, 4")
    a.e(f"v_add_u32 v10, s{S_T0}, v10")
    a.e("v_mul_u32_u24 v10, 9216, v10")
    a.e("v_bfe_u32 v11, v0, 4, 1")
    a.e("v_lshlrev_b32 v11, 2, v11")
    a.e("v_and_b32 v22, 7, v0")
    a.e("v_xor_b32 v11, v11, v22")
    a.e("v_lshl_add_u32 v10, v11, 4, v10")
    for q in range(4):
        a.e(f"v_add_u32 v{V_WD+q}, {4096 + (q & 1) * 8 * 9216 - q * 1024}, v10")
    a.e("v_lshrrev_b32 v10, 5, v0")
    a.e("v_lshlrev_b32 v10, 10, v10")
    a.e("v_bfe_u32 v11, v0, 2, 2")
    a.e("v_lshl_add_u32 v10, v11, 7, v10")
    a.e("v_bfe_u32 v11, v0, 4, 1")
    a.e("v_lshl_add_u32 v10, v11, 5, v10")
    a.e("v_and_b32 v11, 3, v0")
    a.e("v_lshl_add_u32 v10, v11, 3, v10")
    a.e("v_bfe_u32 v11, v0, 3, 1")
    a.e(f"v_lshl_add_u32 v{V_WA}, v11, 6, v10")
    a.e(f"v_xor_b32 v{V_WA+3}, 64, v{V_WA}")
    for f in range(2):
        for hi in (1, 2):
            a.e(f"v_add_u32 v{V_WA+3*f+hi}, {hi * 65536}, v{V_WA+3*f}")
    a.e(f"v_lshlrev_b32 v{V_HO}, 4, v0")

    piece = {}
    for k in range(9): piece[(0, k)] = 6 + k % 4
    for k, p in enumerate([0, 1, 2, 3, 4, 5, 7, 8, 9]): piece[(1, k)] = p
    piece[(2, 0)] = 6
    for k in range(1, 9): piece[(2, k)] = piece[(1, k - 1)]

    def w_dma_ops(c, k):
        ops = []
        def setup():
            a.e(f"s_add_u32 m0, s{S_REG}, {piece[(c, k)] * 4096}")
            a.e(f"s_add_u32 s{S_T1}, s{S_WB}, {k * 64 * 9216 + c * 128}")
        ops.append((2, setup))
        for q in range(4):
            def f(q=q):
                s = SRD_WG if q < 2 else SRD_WU
                a.vmem(f"buffer_load_dwordx4 v{V_WD+q}, s[{s}:{s+3}], s{S_T1} offen offset:{q*1024} lds", ("w", c, k))
            ops.append((18, f))
        return ops
    def x_read_ops(j):
        ops = []
        for ks in range(4):
            for tb in range(2):
                def f(ks=ks, tb=tb):
                    a.lds(f"ds_read_b128 {xreg(4*j+ks, tb)}, v{V_XR+ks} offset:{(2*(j%3) + tb) * 4096}", ("xr", j))
                ops.append((4, f))
        return ops
    def wfrag(buf, i):
        b = V_WF + 16 * buf + 4 * i
        return b
    def w_read_ops(c, k, ks, fs, buf, tag):
        ops = []
        for fi, f in enumerate(fs):
            for mat in range(2):
                for rd in range(2):
                    off = ks * REGION + piece[(c, k)] * 4096 + mat * 2048 + rd * 512
                    b = wfrag(buf, fi * 2 + mat) + 2 * rd
                    def fn(off=off, b=b, f=f, t=(tag, fi * 2 + mat)):
                        a.lds(f"ds_read_b64_tr_b16 v[{b}:{b+1}], v{V_WA+3*f+(off>>16)} offset:{off & 0xffff}", t)
                    ops.append((4, fn))
        return ops
    sc = " sc1" if opt.get("sc1") else ""
    def epi_ops(c, f):
        ops = []
        for tb in range(2):
            G, U = acc(f, 0, tb), acc(f, 1, tb)
            for half in range(2):
                ob = V_ET + 16 + 4 * ((tb * 2 + half) % 4)
                for p in range(4):
                    r0 = half * 8 + 2 * p
                    t0 = V_ET + 4 * (p % 4)
                    def E(s, cost=4):
                        ops.append((cost, lambda s=s: a.e(s)))
                    E(f"v_mul_f32 v{t0}, s{S_NL}, v{G+r0}")
                    E(f"v_mul_f32 v{t0+1}, s{S_NL}, v{G+r0+1}")
                    E(f"v_exp_f32 v{t0}, v{t0}", 8)
                    E(f"v_exp_f32 v{t0+1}, v{t0+1}", 8)
                    E(f"v_mul_f32 v{t0+2}, v{G+r0}, v{U+r0}")
                    E(f"v_add_f32 v{t0}, 1.0, v{t0}")
                    E(f"v_add_f32 v{t0+1}, 1.0, v{t0+1}")
                    E(f"v_rcp_f32 v{t0}, v{t0}", 8)
                    E(f"v_rcp_f32 v{t0+1}, v{t0+1}", 8)
                    E(f"v_mul_f32 v{t0+3}, v{G+r0+1}, v{U+r0+1}")
                    E(f"v_mul_f32 v{t0+2}, v{t0+2}, v{t0}")
                    E(f"v_mul_f32 v{t0+3}, v{t0+3}, v{t0+1}")
                    E(f"v_cvt_pk_bf16_f32 v{ob+p}, v{t0+2}, v{t0+3}")
                off = tb * KS * 1024 + (c * 4 + f * 2 + half) * 1024
                def st(ob=ob, off=off):
                    a.e(f"s_add_u32 s{S_T0}, s{S_HB}, {off}")
                    a.vmem(f"buffer_store_dwordx4 v[{ob}:{ob+3}], v{V_HO}, s[{SRD_H}:{SRD_H+3}], s{S_T0} offen{sc}", ("h", c, f))
                ops.append((18, st))
        return ops

    for j in range(3):
        drain(x_dma_ops(a, j, 2 * j, 32))
        drain(w_dma_ops(0, j))
    drain(w_dma_ops(0, 3))
    if opt.get("warm"): opt["warm"](a)
    a.wait(vm=[("x", 0)])
    drain(x_read_ops(0))
    a.wait(vm=[("w", 0, 0)])
    a.e("s_barrier")
    segs = [(0, [0, 1]), (1, [0]), (1, [1]), (2, [0]), (2, [1])]
    steps = [(c, fs, k) for (c, fs) in segs for k in range(9)]
    bar = {}
    for n in range(8): bar[n] = ([(0, n + 1)], [(0, n + 3)] if 1 <= n <= 5 else [])
    bar[6] = (bar[6][0], [(1, 6)]); bar[7] = (bar[7][0], [(1, 7)])
    bar[8] = ([(1, 0), (1, 1), (1, 2), (1, 3)], [(1, 8)])
    bar[12] = ([(1, k) for k in range(4, 9)], [(2, 0)])
    bar[20] = ([], [(2, 1), (2, 2)])
    bar[23] = ([], [(2, 3), (2, 4), (2, 5)])
    bar[26] = ([(2, 0), (2, 1), (2, 2)], [(2, 6), (2, 7), (2, 8)])
    bar[29] = ([(2, 3), (2, 4), (2, 5)], [])
    bar[32] = ([(2, 6), (2, 7), (2, 8)], [])
    g = Gap(a)
    dmaq, epiq, xrq = [], [], []
    buf = 0
    drain(w_read_ops(0, 0, 0, [0, 1], 0, (0, 0)))
    a.wait(lg=[("xr", 0)])
    dmaq += x_dma_ops(a, 3, 0, 32)
    for n, (c, fs, k) in enumerate(steps):
        if k == 0 and n > 0:
            pc, pfs = segs[n // 9 - 1]
            assert not epiq or True
            drain(epiq)
            for f in pfs:
                if f in fs:
                    a.e("s_nop 7"); a.e("s_nop 3")
                    drain(epi_ops(pc, f))
            for f in pfs:
                if f not in fs: epiq += [(4, lambda: a.e("s_nop 0"))] * 0 + epi_ops(pc, f)
        for ks in range(4):
            s = 4 * k + ks
            if c == 0 and ks == 0 and k < 8:
                a.wait(vm=[("x", k + 1)])
                xrq += x_read_ops(k + 1)
            if c == 0 and ks == 2:
                drain(xrq)
                if k < 8:
                    a.wait(lg=[("xr", k + 1)])
                    if k + 4 <= 8: dmaq += x_dma_ops(a, k + 4, 2 * ((k + 1) % 3), 32)
                    else:
                        kk = 2 * (k - 5)
                        dmaq += w_dma_ops(1, kk) + w_dma_ops(1, kk + 1)
            if ks == 3 and n in bar:
                drain(dmaq) if any(True for _ in bar[n][0] if False) else None
                cover, dl = bar[n]
                a.wait(vm=[("w",) + x for x in cover])
                a.e("s_barrier")
                for x in dl: dmaq += w_dma_ops(*x)
            if ks < 3: nxt = (c, k, ks + 1, fs)
            elif n + 1 < len(steps): nxt = (steps[n+1][0], steps[n+1][2], 0, steps[n+1][1])
            else: nxt = None
            rq = w_read_ops(nxt[0], nxt[1], nxt[2], nxt[3], buf ^ 1, (n * 4 + ks + 1) and divmod(n * 4 + ks + 1, 4)) if nxt else []
            nm = len(fs) * 4
            per = -(-len(rq) // nm) if rq else 0
            i = 0
            for fi, f in enumerate(fs):
                for mat in range(2):
                    a.wait(lg=[((n, ks), fi * 2 + mat)])
                    for tb in range(2):
                        d = acc(f, mat, tb); w = wfrag(buf, fi * 2 + mat)
                        cc = "0" if s == 0 else f"v[{d}:{d+15}]"
                        must = rq[:per]; rq = rq[per:]
                        eq = epiq if not (k == 0 and ks == 0 and i < 3) else []
                        g.mfma(f"v_mfma_f32_32x32x16_bf16 v[{d}:{d+15}], v[{w}:{w+3}], {xreg(s, tb)}, {cc}", must, [xrq, dmaq, eq])
                        i += 1
            assert not rq
            buf ^= 1
    drain(dmaq); drain(epiq)
    a.e("s_nop 7"); a.e("s_nop 3")
    drain(epi_ops(2, 1))


S_SP0, S_SP1 = 98, 99
def spin_wait(a, name, srd_dbg, off_s, cond, vtmp, vzero):
    a.e(f"s_mov_b32 s{S_SP1}, 0x20000")
    a.label(f"L_poll_{name}")
    a.e(f"buffer_load_dword v{vtmp}, v{vzero}, s[{srd_dbg}:{srd_dbg+3}], {off_s} offen sc1")
    a.e("s_waitcnt vmcnt(0)")
    a.e(f"v_readfirstlane_b32 s{S_SP0}, v{vtmp}")
    a.e("s_nop 3")
    cond(a, S_SP0)
    a.e(f"s_cbranch_scc1 L_pdone_{name}")
    a.e(f"s_sub_u32 s{S_SP1}, s{S_SP1}, 1")
    a.e(f"s_cmp_eq_u32 s{S_SP1}, 0")
    a.e(f"s_cbranch_scc1 L_pdone_{name}")
    a.e("s_sleep 2")
    a.e(f"s_branch L_poll_{name}")
    a.label(f"L_pdone_{name}")
    a.vm = []

def cmul(a, d, x, y, t):
    a.e(f"v_mul_f32 v{t}, v{x+1}, v{y+1}")
    a.e(f"v_fma_f32 v{t}, v{x}, v{y}, -v{t}")
    a.e(f"v_mul_f32 v{t+1}, v{x}, v{y+1}")
    a.e(f"v_fma_f32 v{d+1}, v{x+1}, v{y}, v{t+1}")
    a.e(f"v_mov_b32 v{d}, v{t}")
def cfma(a, d, m, c, add, t):
    a.e(f"v_fma_f32 v{t}, v{m}, v{c}, v{add}")
    a.e(f"v_fma_f32 v{t+1}, v{m}, v{c+1}, v{add+1}")
    a.e(f"v_fma_f32 v{t}, -v{m+1}, v{c+1}, v{t}")
    a.e(f"v_fma_f32 v{d+1}, v{m+1}, v{c}, v{t+1}")
    a.e(f"v_mov_b32 v{d}, v{t}")

SRD_BRE, SRD_BIM, SRD_AGG, SRD_DBG, SRD_P = 60, 64, 76, 80, 84
S_GQ, S_CH = 72, 75
V_BD = 10
V_BR = 59
V_PL, V_PC, V_PM, V_PM2, V_PM256 = 14, 20, 26, 32, 38
V_ST = 44
def zreg(cb, ri): return 64 + (cb * 2 + ri) * 32
def ssm_role(a, opt):
    a.c("======== SSM role: Bu = x B^T, chunked scan, h fragments")
    sc = " sc1" if opt.get("sc1") else ""
    a.e(f"s_sub_u32 s{S_GQ}, s{S_J}, 24")
    a.e(f"s_mov_b32 s{S_CH}, s{S_XCD}")
    a.e(f"s_lshl_b32 s{S_HB}, s{S_CH}, 2")
    a.e(f"s_add_u32 s{S_HB}, s{S_HB}, s{S_WAVE}")
    a.e(f"s_mul_i32 s{S_XB}, s{S_HB}, {64 * 1152}")
    a.e(f"s_mul_i32 s{S_HB}, s{S_HB}, {2 * KS * 1024}")
    a.e(f"s_mul_i32 s{S_T1}, s{S_GQ}, {12 * 1024}")
    a.e(f"s_add_u32 s{S_HB}, s{S_HB}, s{S_T1}")
    a.e(f"s_add_u32 s{S_HB}, s{S_HB}, {KS_F * 1024}")
    a.e(f"s_mul_i32 s{S_REG}, s{S_WAVE}, {REGION}")
    srd(a, SRD_X, S_X, T * D * 2)
    srd(a, SRD_BRE, S_BRE, P * D * 2)
    srd(a, SRD_BIM, S_BIM, P * D * 2)
    srd(a, SRD_H, S_WS, H_BYTES)
    srd(a, SRD_AGG, S_WS, AGG_BYTES, add=WS_AGG)
    srd(a, SRD_DBG, S_DBG, 256)
    x_setup(a, True)
    a.e(f"s_mul_i32 s{S_T0}, s{S_GQ}, 192")
    a.e("v_and_b32 v44, 31, v0")
    a.e("v_lshlrev_b32 v44, 1, v44")
    for i, ptr in enumerate((S_LRE, S_LIM, S_LDT)):
        srd(a, SRD_P + 4 * i, ptr, P * 2)
    for cb in range(3):
        a.vmem(f"buffer_load_ushort v{V_PL+2*cb}, v44, s[{SRD_P}:{SRD_P+3}], s{S_T0} offen offset:{cb*64}", "par")
        a.vmem(f"buffer_load_ushort v{V_PL+2*cb+1}, v44, s[{SRD_P+4}:{SRD_P+7}], s{S_T0} offen offset:{cb*64}", "par")
        a.vmem(f"buffer_load_ushort v{V_PC+2*cb}, v44, s[{SRD_P+8}:{SRD_P+11}], s{S_T0} offen offset:{cb*64}", "par")
    a.e("v_lshrrev_b32 v45, 3, v0")
    a.e(f"s_lshl_b32 s{S_T0}, s{S_WAVE}, 3")
    a.e(f"v_add_u32 v45, s{S_T0}, v45")
    a.e("v_mul_u32_u24 v45, 1152, v45")
    a.e("v_and_b32 v46, 7, v0")
    a.e("v_lshrrev_b32 v47, 4, v0")
    a.e("v_xor_b32 v46, v46, v47")
    a.e(f"s_and_b32 s{S_T0}, s{S_WAVE}, 1")
    a.e(f"s_lshl_b32 s{S_T0}, s{S_T0}, 2")
    a.e(f"v_xor_b32 v46, s{S_T0}, v46")
    a.e("v_lshl_add_u32 v45, v46, 4, v45")
    for cb in range(3):
        a.e(f"v_add_u32 v{V_BD+cb}, {cb * (32 * 1152 - 1024)}, v45")
    a.e("v_bfe_u32 v45, v0, 3, 2")
    a.e(f"v_mul_u32_u24 v45, {REGION}, v45")
    a.e("v_and_b32 v46, 7, v0")
    a.e("v_lshl_add_u32 v45, v46, 7, v45")
    a.e("v_bfe_u32 v46, v0, 1, 3")
    a.e("v_lshrrev_b32 v47, 5, v0")
    a.e("v_xor_b32 v46, v46, v47")
    for ks in range(4):
        a.e(f"v_xor_b32 v47, {2*ks}, v46")
        a.e(f"v_lshl_add_u32 v{V_BR+ks}, v47, 4, v45")
    S_BB = 74
    a.e(f"s_mul_i32 s{S_BB}, s{S_GQ}, {96 * 1152}")
    def bslot(j): return 16384 + (j % 4) * 6144
    def b_dma_ops(j):
        ops = []
        for ri in range(2):
            def setup(ri=ri):
                a.e(f"s_add_u32 m0, s{S_REG}, {bslot(j) + ri * 3072}")
                a.e(f"s_add_u32 s{S_T1}, s{S_BB}, {j * 128}")
            ops.append((2, setup))
            for cb in range(3):
                def f(cb=cb, ri=ri):
                    s = SRD_BIM if ri else SRD_BRE
                    a.vmem(f"buffer_load_dwordx4 v{V_BD+cb}, s[{s}:{s+3}], s{S_T1} offen offset:{cb*1024} lds", ("b", j))
                ops.append((18, f))
        return ops
    def xa(j, ks, tb):
        i = (j % 2) * 32 + (ks * 2 + tb) * 4
        return f"a[{i}:{i+3}]"
    def x_read_ops(j):
        ops = []
        for ks in range(4):
            for tb in range(2):
                def f(ks=ks, tb=tb):
                    a.lds(f"ds_read_b128 {xa(j, ks, tb)}, v{V_XR+ks} offset:{(2*(j%2) + tb) * 4096}", ("xr", j))
                ops.append((4, f))
        return ops
    def bf(buf, i):
        b = 64 + buf * 24 + 4 * i
        return f"a[{b}:{b+3}]"
    def b_read_ops(j, ks, buf):
        ops = []
        for cb in range(3):
            for ri in range(2):
                def f(cb=cb, ri=ri):
                    a.lds(f"ds_read_b128 {bf(buf, cb*2+ri)}, v{V_BR+ks} offset:{bslot(j) + ri * 3072 + cb * 1024}", (j, ks, cb * 2 + ri))
                ops.append((4, f))
        return ops
    for j in range(2):
        drain(x_dma_ops(a, j, 2 * j, 8)); drain(b_dma_ops(j))
    drain(b_dma_ops(2)); drain(b_dma_ops(3))
    if opt.get("warm"): opt["warm"](a)
    a.wait(vm=["par"])
    t = V_ST
    a.e(f"s_mov_b32 s{S_T0}, 0x3fb8aa3b")
    a.e(f"s_mov_b32 s{S_T1}, 0x3e22f983")
    for cb in range(3):
        L, C = V_PL + 2 * cb, V_PC + 2 * cb
        M, M2, M256 = V_PM + 2 * cb, V_PM2 + 2 * cb, V_PM256 + 2 * cb
        a.e(f"v_lshlrev_b32 v{L}, 16, v{L}")
        a.e(f"v_lshlrev_b32 v{L+1}, 16, v{L+1}")
        a.e(f"v_lshlrev_b32 v{C}, 16, v{C}")
        a.e(f"v_mul_f32 v{C}, s{S_T0}, v{C}")
        a.e(f"v_exp_f32 v{C}, v{C}")
        a.e("s_nop 0")
        a.e(f"v_cvt_pk_bf16_f32 v{C}, v{C}, v{C}")
        a.e(f"v_lshlrev_b32 v{C}, 16, v{C}")
        a.e(f"v_mul_f32 v{t}, v{C}, v{L}")
        a.e(f"v_mul_f32 v{t+1}, v{C}, v{L+1}")
        a.e(f"v_mul_f32 v{t}, s{S_T0}, v{t}")
        a.e(f"v_mul_f32 v{t+1}, s{S_T1}, v{t+1}")
        a.e(f"v_exp_f32 v{t}, v{t}")
        a.e(f"v_rndne_f32 v{t+2}, v{t+1}")
        a.e(f"v_sub_f32 v{t+1}, v{t+1}, v{t+2}")
        a.e(f"v_cos_f32 v{t+2}, v{t+1}")
        a.e(f"v_sin_f32 v{t+3}, v{t+1}")
        a.e("s_nop 0")
        a.e(f"v_mul_f32 v{M}, v{t}, v{t+2}")
        a.e(f"v_mul_f32 v{M+1}, v{t}, v{t+3}")
        a.e(f"v_mul_f32 v{t}, v{L}, v{L}")
        a.e(f"v_fma_f32 v{t}, v{L+1}, v{L+1}, v{t}")
        a.e(f"v_rcp_f32 v{t}, v{t}")
        a.e(f"v_add_f32 v{t+1}, -1.0, v{M}")
        a.e(f"v_add_f32 v{t}, v{t}, v{t}")
        a.e(f"v_mul_f32 v{t+2}, v{t+1}, v{L}")
        a.e(f"v_fma_f32 v{t+2}, v{M+1}, v{L+1}, v{t+2}")
        a.e(f"v_mul_f32 v{t+3}, v{M+1}, v{L}")
        a.e(f"v_fma_f32 v{t+3}, -v{t+1}, v{L+1}, v{t+3}")
        a.e(f"v_mul_f32 v{C}, v{t+2}, v{t}")
        a.e(f"v_mul_f32 v{C+1}, v{t+3}, v{t}")
        a.e(f"v_mov_b32 v{L}, v{M}")
        a.e(f"v_mov_b32 v{L+1}, v{M+1}")
        for i in range(4): cmul(a, M, M, M, t)
        cmul(a, M2, M, M, t)
        cmul(a, M256, M2, M2, t)
        for i in range(2): cmul(a, M256, M256, M256, t)
    a.wait(vm=[("x", 0)])
    drain(x_read_ops(0))
    a.wait(vm=[("b", 0)])
    a.e("s_barrier")
    g = Gap(a)
    dmaq, xrq = [], []
    drain(b_read_ops(0, 0, 0))
    a.wait(lg=[("xr", 0)])
    dmaq += x_dma_ops(a, 2, 0, 8)
    buf = 0
    for k in range(9):
        for ks in range(4):
            if ks == 0 and k < 8:
                drain(dmaq) if k > 0 and False else None
                a.wait(vm=[("x", k + 1)])
                xrq += x_read_ops(k + 1)
            if ks == 2:
                drain(xrq)
                if k + 3 <= 8:
                    a.wait(lg=[("xr", k + 1)])
                    dmaq += x_dma_ops(a, k + 3, 2 * ((k + 1) % 2), 8)
            if ks == 3 and k < 8:
                a.wait(vm=[("b", k + 1)])
                a.e("s_barrier")
                if 1 <= k <= 5: dmaq += b_dma_ops(k + 3)
            if ks < 3: rq = b_read_ops(k, ks + 1, buf ^ 1)
            elif k < 8: rq = b_read_ops(k + 1, 0, buf ^ 1)
            else: rq = []
            for cb in range(3):
                for ri in range(2):
                    a.wait(lg=[(k, ks, cb * 2 + ri)])
                    for tb in range(2):
                        d = zreg(cb, ri) + 16 * tb
                        cc = "0" if (k == 0 and ks == 0) else f"v[{d}:{d+15}]"
                        must = rq[:1]; rq = rq[1:]
                        g.mfma(f"v_mfma_f32_32x32x16_bf16 v[{d}:{d+15}], {xa(k, ks, tb)}, {bf(buf, cb*2+ri)}, {cc}", must, [xrq, dmaq])
            buf ^= 1
        assert k == 8 or True
    assert not dmaq and not xrq
    a.e("s_nop 7"); a.e("s_nop 3")
    def pk(d, m, sel, x, add, neg=False, negadd=False, negall=False):
        n0 = 1 if neg else 0; n2 = 1 if negadd else 0
        mods = f"op_sel:[{sel},0,0] op_sel_hi:[{sel},1,1]"
        if n0 or n2: mods += f" neg_lo:[{n0},0,{n2}] neg_hi:[{n0},0,{n2}]"
        a.e(f"v_pk_fma_f32 v[{d}:{d+1}], v[{m}:{m+1}], v[{x}:{x+1}], v[{add}:{add+1}] {mods}")
    for j in range(1, 16):
        for cb in range(3):
            L = V_PL + 2 * cb; zr, zi = zreg(cb, 0) + 2 * j, zreg(cb, 1) + 2 * j
            pk(zr, L, 0, zr - 2, zr); pk(zi, L, 0, zi - 2, zi)
        for cb in range(3):
            L = V_PL + 2 * cb; zr, zi = zreg(cb, 0) + 2 * j, zreg(cb, 1) + 2 * j
            pk(zr, L, 1, zi - 2, zr, neg=True); pk(zi, L, 1, zr - 2, zi)
    a.e("s_barrier")
    AG = 36864
    a.e("v_and_b32 v2, 31, v0")
    a.e("v_lshlrev_b32 v2, 3, v2")
    a.e("v_lshrrev_b32 v3, 5, v0")
    a.e("v_mul_u32_u24 v4, 768, v3")
    a.e("v_add_u32 v4, v4, v2")
    a.e(f"v_add_u32 v4, s{S_REG}, v4")
    for cb in range(3):
        M = V_PM + 2 * cb; zr, zi = zreg(cb, 0) + 30, zreg(cb, 1) + 30
        o = t + 2 * cb
        a.e(f"v_fma_f32 v{o}, v{M}, v{zr}, v{zr+1}")
        a.e(f"v_fma_f32 v{o+1}, v{M}, v{zi}, v{zi+1}")
        a.e(f"v_fma_f32 v{o}, -v{M+1}, v{zi}, v{o}")
        a.e(f"v_fma_f32 v{o+1}, v{M+1}, v{zr}, v{o+1}")
        a.lds(f"ds_write_b64 v4, v[{o}:{o+1}] offset:{AG + cb * 256}", "agw")
    a.wait(lg="all")
    a.e("s_barrier")
    a.e(f"v_add_u32 v5, {2 * REGION}, v2")
    def ag_read(i, cb, dst):
        base = 2 if i < 4 else 5
        off = ((i >> 1) & 1) * REGION + AG + (i & 1) * 768 + cb * 256
        if off > 65535:
            raise SystemExit("ag offset")
        a.lds(f"ds_read_b64 a[{dst}:{dst+1}], v{base} offset:{off}", "agr")
    a.e(f"v_add_u32 v2, {AG}, v2")
    a.e(f"v_add_u32 v5, {AG}, v5")
    for i in range(8):
        for cb in range(3):
            base = 2 if i < 4 else 5
            off = ((i >> 1) & 1) * REGION + (i & 1) * 768 + cb * 256
            dst = (i * 3 + cb) * 2
            a.lds(f"ds_read_b64 a[{dst}:{dst+1}], v{base} offset:{off}", "agr")
    a.wait(lg="all")
    S = t
    tt = t + 6
    for cb in range(3):
        a.e(f"v_accvgpr_read_b32 v{S+2*cb}, a{cb*2}")
        a.e(f"v_accvgpr_read_b32 v{S+2*cb+1}, a{cb*2+1}")
    for i in range(1, 8):
        for cb in range(3):
            src = (i * 3 + cb) * 2
            a.e(f"v_accvgpr_read_b32 v{tt+2}, a{src}")
            a.e(f"v_accvgpr_read_b32 v{tt+3}, a{src+1}")
            cfma(a, S + 2 * cb, V_PM2 + 2 * cb, S + 2 * cb, tt + 2, tt)
    a.e("v_and_b32 v6, 31, v0")
    a.e("v_lshlrev_b32 v6, 3, v6")
    a.e("v_mov_b32 v7, 0")
    a.e(f"s_lshl_b32 s{S_T0}, s{S_GQ}, 3")
    a.e(f"s_add_u32 s{S_T0}, s{S_T0}, s{S_CH}")
    a.e(f"s_mul_i32 s{S_T0}, s{S_T0}, 768")
    a.e(f"s_lshl_b32 s{S_T1}, s{S_GQ}, 2")
    a.e(f"s_cmp_lg_u32 s{S_WAVE}, 0")
    a.e("s_cbranch_scc1 L_ssm_nopub")
    for cb in range(3):
        a.e(f"buffer_store_dwordx2 v[{S+2*cb}:{S+2*cb+1}], v6, s[{SRD_AGG}:{SRD_AGG+3}], s{S_T0} offen offset:{cb*256} sc1")
    a.e(f"s_lshl_b32 s{S_SP0}, 1, s{S_CH}")
    a.e(f"v_mov_b32 v8, s{S_SP0}")
    a.e("s_waitcnt vmcnt(0)")
    a.e("s_mov_b64 exec, 1")
    a.e(f"buffer_atomic_or v8, v7, s[{SRD_DBG}:{SRD_DBG+3}], s{S_T1} offen")
    a.e("s_mov_b64 exec, -1")
    S_MASK = 97
    a.e(f"s_sub_u32 s{S_MASK}, s{S_SP0}, 1")
    def cond(a, s):
        a.e(f"s_and_b32 s{s}, s{s}, s{S_MASK}")
        a.e(f"s_cmp_eq_u32 s{s}, s{S_MASK}")
    spin_wait(a, "ssm", SRD_DBG, f"s{S_T1}", cond, 8, 7)
    a.label("L_ssm_nopub")
    a.e("s_barrier")
    for i in range(7, 0, -1):
        a.e(f"s_sub_u32 s{S_T1}, s{S_T0}, {i * 768}")
        a.e(f"s_cmp_ge_u32 s{S_CH}, {i}")
        a.e(f"s_cselect_b32 s{S_T1}, s{S_T1}, 0x100000")
        for cb in range(3):
            dst = 64 + ((i - 1) * 3 + cb) * 2
            a.vmem(f"buffer_load_dwordx2 a[{dst}:{dst+1}], v6, s[{SRD_AGG}:{SRD_AGG+3}], s{S_T1} offen offset:{cb*256} sc1", "lb")
    a.wait(vm="all")
    for cb in range(3):
        src = 64 + (6 * 3 + cb) * 2
        a.e(f"v_accvgpr_read_b32 v{S+2*cb}, a{src}")
        a.e(f"v_accvgpr_read_b32 v{S+2*cb+1}, a{src+1}")
    for i in range(6, 0, -1):
        for cb in range(3):
            src = 64 + ((i - 1) * 3 + cb) * 2
            a.e(f"v_accvgpr_read_b32 v{tt+2}, a{src}")
            a.e(f"v_accvgpr_read_b32 v{tt+3}, a{src+1}")
            cfma(a, S + 2 * cb, V_PM256 + 2 * cb, S + 2 * cb, tt + 2, tt)
    a.e(f"s_lshl_b32 s{S_T0}, s{S_WAVE}, 1")
    a.e(f"v_add_u32 v3, s{S_T0}, v3")
    for i in range(7):
        a.e(f"v_cmp_lt_u32 vcc, {i}, v3")
        a.e("s_mov_b64 exec, vcc")
        for cb in range(3):
            src = (i * 3 + cb) * 2
            a.e(f"v_accvgpr_read_b32 v{tt+2}, a{src}")
            a.e(f"v_accvgpr_read_b32 v{tt+3}, a{src+1}")
            cfma(a, S + 2 * cb, V_PM2 + 2 * cb, S + 2 * cb, tt + 2, tt)
        a.e("s_mov_b64 exec, -1")
    for cb in range(3):
        M, C = V_PM + 2 * cb, V_PC + 2 * cb
        zr, zi = zreg(cb, 0) + 30, zreg(cb, 1) + 30
        c = S + 2 * cb
        wr, wi = V_PM2 + 2 * cb, V_PM256 + 2 * cb
        a.e(f"v_fma_f32 v{tt}, v{M}, v{c}, v{zr}")
        a.e(f"v_fma_f32 v{tt+1}, v{M}, v{c+1}, v{zi}")
        a.e(f"v_fma_f32 v{tt}, -v{M+1}, v{c+1}, v{tt}")
        a.e(f"v_fma_f32 v{tt+1}, v{M+1}, v{c}, v{tt+1}")
        a.e(f"v_mul_f32 v{wr}, v{C}, v{c}")
        a.e(f"v_fma_f32 v{wr}, -v{C+1}, v{c+1}, v{wr}")
        a.e(f"v_mul_f32 v{wi}, v{C}, v{c+1}")
        a.e(f"v_fma_f32 v{wi}, v{C+1}, v{c}, v{wi}")
        a.e(f"v_mul_f32 v{wr+1}, v{C}, v{tt}")
        a.e(f"v_fma_f32 v{wr+1}, -v{C+1}, v{tt+1}, v{wr+1}")
        a.e(f"v_mul_f32 v{wi+1}, v{C}, v{tt+1}")
        a.e(f"v_fma_f32 v{wi+1}, v{C+1}, v{tt}, v{wi+1}")
    def pkmul(d, m, sel, x):
        a.e(f"v_pk_mul_f32 v[{d}:{d+1}], v[{m}:{m+1}], v[{x}:{x+1}] op_sel:[{sel},0] op_sel_hi:[{sel},1]")
    for j in range(16):
        for cb in range(3):
            L = V_PL + 2 * cb; wr, wi = V_PM2 + 2 * cb, V_PM256 + 2 * cb; u = t + 4 * cb
            pkmul(u, L, 0, wr); pkmul(u + 2, L, 0, wi)
        for cb in range(3):
            L = V_PL + 2 * cb; wr, wi = V_PM2 + 2 * cb, V_PM256 + 2 * cb; u = t + 4 * cb
            pk(u, L, 1, wi, u, neg=True); pk(wi, L, 1, wr, u + 2)
        for cb in range(3):
            C = V_PC + 2 * cb; wr, wi = V_PM2 + 2 * cb, V_PM256 + 2 * cb; u = t + 4 * cb
            zr, zi = zreg(cb, 0) + 2 * j, zreg(cb, 1) + 2 * j
            a.e(f"v_pk_mov_b32 v[{wr}:{wr+1}], v[{u}:{u+1}], v[{u}:{u+1}] op_sel:[0,1]")
            pk(u, C, 0, zr, u)
            pk(u + 2, C, 1, zr, wi)
        for cb in range(3):
            C = V_PC + 2 * cb; u = t + 4 * cb
            zr, zi = zreg(cb, 0) + 2 * j, zreg(cb, 1) + 2 * j
            pk(zr, C, 1, zi, u, neg=True)
            pk(zi, C, 0, zi, u + 2, neg=True, negadd=True)
    a.e("v_and_b32 v2, 31, v0")
    a.e("v_mul_u32_u24 v2, 144, v2")
    a.e("v_lshrrev_b32 v3, 5, v0")
    a.e("v_lshl_add_u32 v2, v3, 6, v2")
    a.e(f"v_add_u32 v2, s{S_REG}, v2")
    n = 0
    for ri in range(2):
        for cb in range(3):
            z = zreg(cb, ri)
            for q in range(2):
                for hf in range(2):
                    o = 4 + 4 * (n % 8) + (0 if True else 0); n += 1
                    o = 12 + 4 * ((n - 1) % 8)
                    for i in range(4):
                        j = hf * 8 + 2 * i
                        a.e(f"v_cvt_pk_bf16_f32 v{o+i}, v{z+2*j+q}, v{z+2*(j+1)+q}")
                    a.lds(f"ds_write_b128 v2, v[{o}:{o+3}] offset:{(ri*96+cb*32)*144 + q*32 + hf*16}", "hw")
    a.e("v_lshlrev_b32 v3, 3, v3")
    a.e("v_bfe_u32 v4, v0, 2, 2")
    a.e("v_add_u32 v3, v3, v4")
    a.e("v_mul_u32_u24 v3, 144, v3")
    a.e("v_bfe_u32 v4, v0, 4, 1")
    a.e("v_lshl_add_u32 v3, v4, 5, v3")
    a.e("v_and_b32 v4, 3, v0")
    a.e("v_lshl_add_u32 v3, v4, 3, v3")
    a.e(f"v_add_u32 v3, s{S_REG}, v3")
    a.e("v_lshlrev_b32 v4, 4, v0")
    a.wait(lg="all")
    for tb in range(2):
        for i in range(12):
            o = 64 + (tb * 12 + i) * 4
            for rd in range(2):
                a.lds(f"ds_read_b64_tr_b16 v[{o+2*rd}:{o+2*rd+1}], v3 offset:{(16*i + 4*rd)*144 + tb*64}", ("ht", tb, i))
    for tb in range(2):
        for i in range(12):
            o = 64 + (tb * 12 + i) * 4
            if i % 4 == 0: a.e(f"s_add_u32 s{S_T0}, s{S_HB}, {tb * KS * 1024 + i * 1024}")
            a.wait(lg=[("ht", tb, i)])
            a.vmem(f"buffer_store_dwordx4 v[{o}:{o+3}], v4, s[{SRD_H}:{SRD_H+3}], s{S_T0} offen offset:{(i%4)*1024}{sc}", "hs")

SRD_A, SRD_B, SRD_C = 60, 64, 76
def prep_role(a, opt):
    a.c("======== prep role: Wd/C -> fragment order, gate g")
    sc = " sc1" if opt.get("sc1") else ""
    S_GW_ = 72
    a.e(f"s_sub_u32 s{S_T0}, s{S_J}, 30")
    a.e(f"s_lshl_b32 s{S_T0}, s{S_T0}, 3")
    a.e(f"s_add_u32 s{S_T0}, s{S_T0}, s{S_XCD}")
    a.e(f"s_lshl_b32 s{S_T0}, s{S_T0}, 2")
    a.e(f"s_add_u32 s{S_GW_}, s{S_T0}, s{S_WAVE}")
    a.e(f"s_mul_i32 s{S_REG}, s{S_WAVE}, {REGION}")
    srd(a, SRD_A, S_WD, F * D * 2)
    srd(a, SRD_B, S_WS, W2_BYTES, add=WS_W2)
    a.e("v_lshlrev_b32 v1, 4, v0")
    for i in range(9):
        a.e(f"v_add_u32 v2, {i * 64}, v0")
        a.e("v_mul_u32_u24 v3, 1821, v2")
        a.e("v_lshrrev_b32 v3, 16, v3")
        a.e("v_mul_u32_u24 v4, 36, v3")
        a.e("v_add_u32 v4, v4, v2")
        a.e(f"v_lshlrev_b32 v{10+i}, 4, v4")
    a.e("v_lshrrev_b32 v2, 5, v0")
    a.e("v_lshlrev_b32 v2, 2, v2")
    a.e("v_bfe_u32 v3, v0, 2, 2")
    a.e("v_add_u32 v2, v2, v3")
    a.e("v_mul_u32_u24 v2, 576, v2")
    a.e("v_bfe_u32 v3, v0, 4, 1")
    a.e("v_lshl_add_u32 v2, v3, 5, v2")
    a.e("v_and_b32 v3, 3, v0")
    a.e("v_lshl_add_u32 v2, v3, 3, v2")
    a.e(f"v_add_u32 v2, s{S_REG}, v2")
    S_HS = 73
    a.e(f"s_mul_i32 s{S_HS}, s{S_GW_}, 9")
    def wd_issue(i):
        a.e(f"s_add_u32 s{S_T0}, s{S_HS}, {i}")
        a.e(f"s_and_b32 s{S_T1}, s{S_T0}, 1")
        a.e(f"s_lshr_b32 s{S_T0}, s{S_T0}, 1")
        a.e(f"s_mul_i32 s{S_T0}, s{S_T0}, 18432")
        a.e(f"s_mul_i32 s{S_T1}, s{S_T1}, 576")
        a.e(f"s_add_u32 s{S_T0}, s{S_T0}, s{S_T1}")
        for n in range(9):
            a.e(f"s_add_u32 m0, s{S_REG}, {(i % 4) * 9216 + n * 1024}")
            a.e("s_nop 0")
            a.vmem(f"buffer_load_dwordx4 v{10+n}, s[{SRD_A}:{SRD_A+3}], s{S_T0} offen lds", ("wd", i))
    for i in range(4): wd_issue(i)
    if opt.get("warm"): opt["warm"](a)
    for i in range(9):
        a.wait(vm=[("wd", i)])
        rb = 64 + (i % 2) * 36
        for n in range(9):
            for rd in range(2):
                a.lds(f"ds_read_b64_tr_b16 v[{rb+4*n+2*rd}:{rb+4*n+2*rd+1}], v2 offset:{(i % 4) * 9216 + rd * 8 * 576 + n * 64}", ("wr", i, n))
        a.e(f"s_add_u32 s{S_T1}, s{S_HS}, {i}")
        a.e(f"s_mul_i32 s74, s{S_T1}, 9216")
        for n in range(9):
            if n % 4 == 0 and n: a.e("s_add_u32 s74, s74, 4096")
            a.wait(lg=[("wr", i, n)])
            a.vmem(f"buffer_store_dwordx4 v[{rb+4*n}:{rb+4*n+3}], v1, s[{SRD_B}:{SRD_B+3}], s74 offen offset:{(n%4)*1024}{sc}", ("ws", i))
        if i + 4 < 9: wd_issue(i + 4)
        if i >= 1: a.wait(vm=[("ws", i - 1)])
    a.e(f"s_cmp_ge_u32 s{S_GW_}, 36")
    a.e("s_cbranch_scc1 L_prep_noc")
    a.e(f"s_cmp_ge_u32 s{S_GW_}, 18")
    a.e(f"s_cselect_b32 s{SRD_C}, s{S_CIM}, s{S_CRE}")
    a.e(f"s_cselect_b32 s{SRD_C+1}, s{S_CIM+1}, s{S_CRE+1}")
    a.e(f"s_cselect_b32 s{S_T1}, 18, 0")
    a.e(f"s_cselect_b32 s74, {6 * 18 * 1024}, 0")
    a.e(f"s_mov_b32 s{SRD_C+2}, {D * P * 2}")
    a.e(f"s_mov_b32 s{SRD_C+3}, 0x20000")
    a.e(f"s_sub_u32 s{S_T1}, s{S_GW_}, s{S_T1}")
    a.e(f"s_mul_i32 s{S_T0}, s{S_T1}, {32 * 1152}")
    a.e(f"s_lshl_b32 s{S_T1}, s{S_T1}, 10")
    a.e(f"s_add_u32 s74, s74, s{S_T1}")
    a.e(f"s_add_u32 s74, s74, {KS_F * 18 * 1024}")
    a.e("v_and_b32 v3, 31, v0")
    a.e("v_mul_u32_u24 v3, 1152, v3")
    a.e("v_lshrrev_b32 v4, 5, v0")
    a.e("v_lshl_add_u32 v3, v4, 4, v3")
    a.wait(vm="all")
    for i in range(36):
        a.vmem(f"buffer_load_dwordx4 v[{64+4*i}:{67+4*i}], v3, s[{SRD_C}:{SRD_C+3}], s{S_T0} offen offset:{i*32}", ("c", i))
    for i in range(36):
        gq, ii = divmod(i, 6)
        a.e(f"s_add_u32 s{S_T1}, s74, {(gq * 12 + ii) * 18 * 1024}")
        a.wait(vm=[("c", i)])
        a.vmem(f"buffer_store_dwordx4 v[{64+4*i}:{67+4*i}], v1, s[{SRD_B}:{SRD_B+3}], s{S_T1} offen{sc}", "cs")
    a.label("L_prep_noc")
    a.e("s_waitcnt vmcnt(0)"); a.vm = []
    a.e(f"s_cmp_lt_u32 s{S_GW_}, 32")
    a.e("s_cbranch_scc1 L_prep_nog")
    srd(a, SRD_X, S_X, T * D * 2)
    srd(a, SRD_A, S_GW, D * 2)
    srd(a, SRD_C, S_WS, 2 * G_BYTES, add=WS_G)
    a.e("v_and_b32 v3, 7, v0")
    a.e("v_lshlrev_b32 v3, 4, v3")
    a.e("v_lshrrev_b32 v4, 3, v0")
    a.e("v_mul_u32_u24 v5, 1152, v4")
    a.e("v_add_u32 v5, v5, v3")
    a.e("v_lshlrev_b32 v4, 2, v4")
    for c in range(9):
        a.vmem(f"buffer_load_dwordx4 v[{20+4*c}:{23+4*c}], v3, s[{SRD_A}:{SRD_A+3}], 0 offen offset:{c*128}", "gw")
    a.e(f"s_sub_u32 s{S_T1}, s{S_GW_}, 32")
    a.e(f"s_mul_i32 s{S_T0}, s{S_T1}, {64 * 1152}")
    a.e(f"s_lshl_b32 s{S_T1}, s{S_T1}, 8")
    a.e(f"s_mov_b32 s{S_NL}, 0xbfb8aa3b")
    def gl(gp):
        a.e(f"s_add_u32 s75, s{S_T0}, {gp * 8 * 1152}")
        for c in range(9):
            b = 64 + (gp % 4) * 36 + 4 * c
            a.vmem(f"buffer_load_dwordx4 v[{b}:{b+3}], v5, s[{SRD_X}:{SRD_X+3}], s75 offen offset:{c*128}", ("gx", gp))
    for gp in range(4): gl(gp)
    for gp in range(8):
        a.wait(vm=[("gx", gp)])
        b = 64 + (gp % 4) * 36
        a.e("v_mov_b32 v6, 0"); a.e("v_mov_b32 v7, 0")
        for i in range(36):
            a.e(f"v_dot2c_f32_bf16 v{6 + (i & 1)}, v{b+i}, v{20+i}")
        a.e("s_nop 3")
        a.e("v_add_f32 v6, v6, v7")
        a.e("s_nop 1")
        a.e("v_add_f32_dpp v6, v6, v6 quad_perm:[1,0,3,2] row_mask:0xf bank_mask:0xf")
        a.e("s_nop 1")
        a.e("v_add_f32_dpp v6, v6, v6 quad_perm:[2,3,0,1] row_mask:0xf bank_mask:0xf")
        a.e("s_nop 1")
        a.e("v_add_f32_dpp v6, v6, v6 row_half_mirror row_mask:0xf bank_mask:0xf")
        a.e("v_cvt_pk_bf16_f32 v6, v6, v6")
        a.e("v_lshlrev_b32 v6, 16, v6")
        a.e(f"v_mul_f32 v6, s{S_NL}, v6")
        a.e("v_exp_f32 v6, v6")
        a.e("s_nop 0")
        a.e("v_add_f32 v6, 1.0, v6")
        a.e("v_rcp_f32 v6, v6")
        a.e("s_nop 0")
        a.e("v_cvt_pk_bf16_f32 v6, v6, v6")
        a.e("v_lshlrev_b32 v8, 16, v6")
        a.e("v_sub_f32 v9, 1.0, v8")
        a.e("v_cvt_pk_bf16_f32 v9, v9, v9")
        a.e("v_lshlrev_b32 v9, 16, v9")
        if gp + 4 < 8: gl(gp + 4)
        a.vmem(f"buffer_store_dword v8, v4, s[{SRD_C}:{SRD_C+3}], s{S_T1} offen offset:{gp*32}{sc}", "gs")
        a.e(f"s_add_u32 s75, s{S_T1}, {G_BYTES}")
        a.vmem(f"buffer_store_dword v9, v4, s[{SRD_C}:{SRD_C+3}], s75 offen offset:{gp*32}{sc}", "gs")
    a.label("L_prep_nog")
    a.vm = []

def p2_role(a, opt):
    a.c("======== phase 2: out tile 64 tokens x 96 cols, K split over the 4 waves")
    sc = " sc1" if opt.get("sc1") else ""
    S_TM, S_Q = 72, 73
    S_HO, S_WO, S_IT = 74, 75, 76
    SRD_W2, SRD_G, SRD_O, SRD_DS = 60, 64, 80, 84
    a.e(f"s_mul_i32 s{S_T0}, s{S_J}, 43")
    a.e(f"s_lshr_b32 s{S_T0}, s{S_T0}, 7")
    a.e(f"s_mul_i32 s{S_T1}, s{S_T0}, 3")
    a.e(f"s_sub_u32 s{S_Q}, s{S_J}, s{S_T1}")
    a.e(f"s_lshr_b32 s{S_T1}, s{S_XCD}, 1")
    a.e(f"s_lshl_b32 s{S_T1}, s{S_T1}, 3")
    a.e(f"s_add_u32 s{S_TM}, s{S_T0}, s{S_T1}")
    a.e(f"s_and_b32 s{S_T1}, s{S_XCD}, 1")
    a.e(f"s_mul_i32 s{S_T1}, s{S_T1}, 3")
    a.e(f"s_add_u32 s{S_Q}, s{S_Q}, s{S_T1}")
    srd(a, SRD_H, S_WS, H_BYTES)
    srd(a, SRD_W2, S_WS, W2_BYTES, add=WS_W2)
    srd(a, SRD_G, S_WS, 2 * G_BYTES, add=WS_G)
    srd(a, SRD_O, S_OUT, T * D * 4)
    srd(a, SRD_X, S_X, T * D * 2)
    srd(a, SRD_DS, S_DSK, D * 2)
    a.e("v_lshlrev_b32 v1, 4, v0")
    a.e(f"v_add_u32 v2, {KS * 1024}, v1")
    S_HB0, S_WB0 = 77, 78
    a.e(f"s_mul_i32 s{S_HB0}, s{S_TM}, {2 * KS * 1024}")
    a.e(f"s_mul_i32 s{S_WB0}, s{S_Q}, 3072")
    a.e(f"s_mul_i32 s{S_T0}, s{S_WAVE}, {72 * 1024}")
    a.e(f"s_add_u32 s{S_HO}, s{S_HB0}, s{S_T0}")
    a.e(f"s_mul_i32 s{S_T0}, s{S_WAVE}, {72 * 18432}")
    a.e(f"s_add_u32 s{S_WO}, s{S_WB0}, s{S_T0}")
    DEP = 9
    def freg(u, i):
        b = u * 20 + 4 * i
        return f"a[{b}:{b+3}]"
    def loads(u):
        ops = []
        ops.append(lambda: a.e(f"buffer_load_dwordx4 {freg(u,0)}, v1, s[{SRD_H}:{SRD_H+3}], s{S_HO} offen{sc}"))
        ops.append(lambda: a.e(f"buffer_load_dwordx4 {freg(u,2)}, v1, s[{SRD_W2}:{SRD_W2+3}], s{S_WO} offen{sc}"))
        ops.append(lambda: a.e(f"buffer_load_dwordx4 {freg(u,1)}, v2, s[{SRD_H}:{SRD_H+3}], s{S_HO} offen{sc}"))
        ops.append(lambda: a.e(f"buffer_load_dwordx4 {freg(u,3)}, v1, s[{SRD_W2}:{SRD_W2+3}], s{S_WO} offen offset:1024{sc}"))
        def last():
            a.e(f"buffer_load_dwordx4 {freg(u,4)}, v1, s[{SRD_W2}:{SRD_W2+3}], s{S_WO} offen offset:2048{sc}")
            a.e(f"s_add_u32 s{S_HO}, s{S_HO}, 1024")
            a.e(f"s_add_u32 s{S_WO}, s{S_WO}, 18432")
        ops.append(last)
        return ops
    for u in range(DEP):
        for f in loads(u): f()
    def accr(setb, tb, nb): return setb + (tb * 3 + nb) * 16
    ACC_F, ACC_S = 64, 160
    for r in range(64, 256): a.e(f"v_mov_b32 v{r}, 0")
    def body(setb, prefetch, vm0=None):
        for u in range(DEP):
            n = (DEP - 1) * 5 if prefetch else (DEP - 1 - u) * 5
            a.e(f"s_waitcnt vmcnt({n})")
            for tb in range(2):
                for nb in range(3):
                    d = accr(setb, tb, nb)
                    a.e(f"v_mfma_f32_32x32x16_bf16 v[{d}:{d+15}], {freg(u, tb)}, {freg(u, 2+nb)}, v[{d}:{d+15}]")
            if prefetch:
                for f in loads(u): f()
    a.e(f"s_mov_b32 s{S_IT}, 0")
    a.label("L_p2_ffn")
    a.e(f"s_cmp_eq_u32 s{S_IT}, 7")
    a.e("s_cbranch_scc0 L_p2_nosw")
    a.e(f"s_mul_i32 s{S_T0}, s{S_WAVE}, 18")
    a.e(f"s_add_u32 s{S_T0}, s{S_T0}, {KS_F}")
    a.e(f"s_lshl_b32 s{S_HO}, s{S_T0}, 10")
    a.e(f"s_add_u32 s{S_HO}, s{S_HO}, s{S_HB0}")
    a.e(f"s_mul_i32 s{S_WO}, s{S_T0}, 18432")
    a.e(f"s_add_u32 s{S_WO}, s{S_WO}, s{S_WB0}")
    a.label("L_p2_nosw")
    body(ACC_F, True)
    a.e(f"s_add_u32 s{S_IT}, s{S_IT}, 1")
    a.e(f"s_cmp_lt_u32 s{S_IT}, 8")
    a.e("s_cbranch_scc1 L_p2_ffn")
    body(ACC_S, True)
    body(ACC_S, False)
    a.e("v_lshrrev_b32 v3, 5, v0")
    a.e("v_lshlrev_b32 v3, 4, v3")
    a.e(f"s_lshl_b32 s{S_T0}, s{S_TM}, 8")
    a.e(f"s_add_u32 s{S_T1}, s{S_T0}, {G_BYTES}")
    a.vm = []
    for tb in range(2):
        for qd in range(4):
            a.vmem(f"buffer_load_dwordx4 v[{8+qd*4}:{11+qd*4}], v3, s[{SRD_G}:{SRD_G+3}], s{S_T0} offen offset:{tb*128 + qd*32}{sc}", "g")
            a.vmem(f"buffer_load_dwordx4 v[{24+qd*4}:{27+qd*4}], v3, s[{SRD_G}:{SRD_G+3}], s{S_T1} offen offset:{tb*128 + qd*32}{sc}", "g")
        a.wait(vm="all")
        if tb == 0: a.e("s_nop 7")
        for nb in range(3):
            f_, s_ = accr(ACC_F, tb, nb), accr(ACC_S, tb, nb)
            for r in range(16):
                a.e(f"v_mul_f32 v{f_+r}, v{f_+r}, v{24+r}")
                a.e(f"v_fma_f32 v{f_+r}, v{s_+r}, v{8+r}, v{f_+r}")
    RS = 400
    WSZ = 64 * RS
    a.e("v_and_b32 v4, 31, v0")
    a.e("v_lshlrev_b32 v4, 2, v4")
    a.e("v_lshrrev_b32 v5, 5, v0")
    a.e(f"v_mul_u32_u24 v5, {4 * RS}, v5")
    a.e("v_add_u32 v4, v4, v5")
    a.e(f"s_mul_i32 s{S_T0}, s{S_WAVE}, {WSZ}")
    a.e(f"v_add_u32 v4, s{S_T0}, v4")
    for tb in range(2):
        for nb in range(3):
            d = accr(ACC_F, tb, nb)
            for r in range(16):
                row = tb * 32 + (r & 3) + 8 * (r >> 2)
                a.lds(f"ds_write_b32 v4, v{d+r} offset:{row * RS + nb * 128}", "rw")
    V_LA, V_OA, V_XA, V_DA, V_GA = 8, 14, 20, 26, 32
    a.e(f"s_mul_i32 s{S_T0}, s{S_WAVE}, 384")
    for i in range(6):
        a.e(f"v_add_u32 v5, s{S_T0}, v0")
        a.e(f"v_add_u32 v5, {i * 64}, v5")
        a.e("v_mul_u32_u24 v6, 2731, v5")
        a.e("v_lshrrev_b32 v6, 16, v6")
        a.e("v_mul_u32_u24 v7, 24, v6")
        a.e("v_sub_u32 v7, v5, v7")
        a.e(f"v_mul_u32_u24 v5, {RS}, v6")
        a.e(f"v_lshl_add_u32 v{V_LA+i}, v7, 4, v5")
        a.e("v_mul_u32_u24 v5, 2304, v6")
        a.e(f"v_lshl_add_u32 v{V_OA+i}, v7, 4, v5")
        a.e(f"v_lshrrev_b32 v{V_XA+i}, 1, v{V_OA+i}")
        a.e(f"v_lshlrev_b32 v{V_DA+i}, 3, v7")
        a.e(f"v_lshlrev_b32 v{V_GA+i}, 2, v6")
    a.e(f"s_mul_i32 s{S_HO}, s{S_TM}, {64 * 2304}")
    a.e(f"s_mul_i32 s{S_T0}, s{S_Q}, 384")
    a.e(f"s_add_u32 s{S_HO}, s{S_HO}, s{S_T0}")
    a.e(f"s_lshr_b32 s{S_WO}, s{S_HO}, 1")
    a.e(f"s_lshr_b32 s{S_T0}, s{S_T0}, 1")
    a.e(f"s_lshl_b32 s{S_T1}, s{S_TM}, 8")
    XV, DV, GV = 40, 52, 160
    for i in range(6):
        a.vmem(f"buffer_load_dwordx2 v[{XV+2*i}:{XV+2*i+1}], v{V_XA+i}, s[{SRD_X}:{SRD_X+3}], s{S_WO} offen", "fx")
        a.vmem(f"buffer_load_dwordx2 v[{DV+2*i}:{DV+2*i+1}], v{V_DA+i}, s[{SRD_DS}:{SRD_DS+3}], s{S_T0} offen", "fx")
        a.vmem(f"buffer_load_dword v{GV+i}, v{V_GA+i}, s[{SRD_G}:{SRD_G+3}], s{S_T1} offen{sc}", "fx")
    a.wait(lg="all")
    a.e("s_barrier")
    RB = 64
    for i in range(6):
        a.e(f"v_add_u32 v5, {2 * WSZ}, v{V_LA+i}")
        for w in range(4):
            b = RB + (i * 4 + w) * 4
            ad = f"v{V_LA+i}" if w < 2 else "v5"
            a.lds(f"ds_read_b128 v[{b}:{b+3}], {ad} offset:{(w & 1) * WSZ}", ("rr", i))
    a.wait(vm="all")
    for i in range(6):
        a.wait(lg=[("rr", i)])
        b = RB + i * 16
        for e in range(4):
            a.e(f"v_add_f32 v{b+e}, v{b+e}, v{b+4+e}")
            a.e(f"v_add_f32 v{b+8+e}, v{b+8+e}, v{b+12+e}")
        for e in range(4):
            xs, ds_ = XV + 2 * i + (e >> 1), DV + 2 * i + (e >> 1)
            if e & 1:
                a.e(f"v_and_b32 v5, 0xffff0000, v{xs}"); a.e(f"v_and_b32 v6, 0xffff0000, v{ds_}")
            else:
                a.e(f"v_lshlrev_b32 v5, 16, v{xs}"); a.e(f"v_lshlrev_b32 v6, 16, v{ds_}")
            a.e("v_mul_f32 v5, v5, v6")
            a.e("v_cvt_pk_bf16_f32 v5, v5, v5")
            a.e("v_lshlrev_b32 v5, 16, v5")
            a.e(f"v_add_f32 v{b+e}, v{b+e}, v{b+8+e}")
            a.e(f"v_fma_f32 v{b+e}, v5, v{GV+i}, v{b+e}")
        a.vmem(f"buffer_store_dwordx4 v[{b}:{b+3}], v{V_OA+i}, s[{SRD_O}:{SRD_O+3}], s{S_HO} offen", "o")

KD = """.section .rodata,"a"
.p2align 6
.amdhsa_kernel {name}
  .amdhsa_next_free_vgpr {vgpr}
  .amdhsa_next_free_sgpr 102
  .amdhsa_accum_offset 256
  .amdhsa_group_segment_fixed_size 0
  .amdhsa_kernarg_size 136
  .amdhsa_user_sgpr_count 2
  .amdhsa_user_sgpr_kernarg_segment_ptr 1
  .amdhsa_system_sgpr_workgroup_id_x 1
  .amdhsa_float_denorm_mode_32 3
.end_amdhsa_kernel
.text
"""

def kernel_head(a, name):
    a.raw(f".globl {name}\n.p2align 8\n.type {name},@function")
    a.label(name)


HEADER = open("gated_mix__ssm_conv_s5__swiglu_ffn__prompt.s.ref").read().split("; Override launch")[0]

if __name__ == "__main__":
    a = Asm()
    a.raw(HEADER.rstrip())
    a.raw("; @launch kernel=k1_kernel grid=(256,1,1) block=(256,1,1) lds=163840")
    a.raw("; @launch kernel=k2_kernel grid=(192,1,1) block=(256,1,1) lds=102400")
    a.raw('.amdgcn_target "amdgcn-amd-amdhsa--gfx950"\n.text')
    kernel_head(a, "k1_kernel")
    common_prologue(a, 256, "L_k1_end")
    a.e(f"s_cmp_ge_u32 s{S_J}, 30")
    a.e("s_cbranch_scc1 L_k1_prep")
    a.e(f"s_cmp_ge_u32 s{S_J}, 24")
    a.e("s_cbranch_scc1 L_k1_ssm")
    g1_role(a, {})
    a.e("s_endpgm")
    a.label("L_k1_ssm"); a.vm = []; a.lg = []
    ssm_role(a, {})
    a.e("s_endpgm")
    a.label("L_k1_prep"); a.vm = []; a.lg = []
    prep_role(a, {})
    a.label("L_k1_end")
    a.e("s_endpgm")
    a.raw(KD.format(name="k1_kernel", vgpr=512))
    a.vm = []; a.lg = []
    kernel_head(a, "k2_kernel")
    common_prologue(a, 192, "L_k2_end")
    p2_role(a, {})
    a.label("L_k2_end")
    a.e("s_endpgm")
    a.raw(KD.format(name="k2_kernel", vgpr=512))
    lines = a.text().split("\n")
    errs = lint(lines)
    open(sys.argv[1], "w").write(a.text())
    print("lint errors:", len(errs), "lines:", len(lines))
```
